```python
import torch

def _softmax(x, axis=-1):
    return torch.softmax(x, dim=axis)
def _gelu(x):
    return torch.nn.functional.gelu(x, approximate="tanh")
def _silu(x):
    return torch.nn.functional.silu(x)
def _sigmoid(x):
    return torch.sigmoid(x)
def _layernorm(x, axis=-1, eps=1e-5):
    m = x.mean(dim=axis, keepdim=True)
    v = x.var(dim=axis, keepdim=True, unbiased=False)
    return (x - m) / torch.sqrt(v + eps)
def _scatter_add(tgt, idx, src, axis=0):
    return tgt.clone().index_add_(axis, idx, src)
def _segment_sum(src, seg, n):
    out = torch.zeros((n,) + src.shape[1:], dtype=src.dtype)
    return out.index_add_(0, seg, src)
def _pad(x, pw):
    flat = tuple(v for pair in reversed(pw) for v in pair)
    return torch.nn.functional.pad(x, flat)

kernel_name = 'concat_heads__gqa_block_cached__sliding_block_cached__decode'

def setup_inputs():

    _w = (lambda a: (lambda t: t.to(torch.bfloat16) if t.is_floating_point() else t)(torch.as_tensor(a)))
    def _A_setup():
        B, Sq, D = 4, 1, 512
        Hq, Hkv, Sk, Dh = 32, 8, 8192, 128
        assert Hq % Hkv == 0, (Hq, Hkv)
        return {
            "x": _w((lambda *s: torch.randn(*s, dtype=torch.bfloat16) * 0.8)(B, Sq, D)),
            "k_cache": _w((lambda *s: torch.randn(*s, dtype=torch.bfloat16) * 1.6)(B, Hkv, Sk, Dh)),
            "v_cache": _w((lambda *s: torch.randn(*s, dtype=torch.bfloat16) * 0.2)(B, Hkv, Sk, Dh)),
            "wq": _w((lambda *s: torch.randn(*s, dtype=torch.bfloat16) * 1.6)(D, Hq * Dh) * (D ** -0.5)),
            "wo": _w((lambda *s: torch.randn(*s, dtype=torch.bfloat16) * 0.2)(Hq * Dh, D) * ((Hq * Dh) ** -0.5)),
        }
    _A_in = _A_setup()

    def _B_setup():
        B, Sq, D = 4, 1, 512
        Hq, Hkv, Sk, Dh = 32, 8, 8192, 128
        assert Hq % Hkv == 0, (Hq, Hkv)
        return {
            "x": _w((lambda *s: torch.randn(*s, dtype=torch.bfloat16) * 0.8)(B, Sq, D)),
            "k_cache": _w((lambda *s: torch.randn(*s, dtype=torch.bfloat16) * 1.6)(B, Hkv, Sk, Dh)),
            "v_cache": _w((lambda *s: torch.randn(*s, dtype=torch.bfloat16) * 0.2)(B, Hkv, Sk, Dh)),
            "wq": _w((lambda *s: torch.randn(*s, dtype=torch.bfloat16) * 1.6)(D, Hq * Dh) * (D ** -0.5)),
            "wo": _w((lambda *s: torch.randn(*s, dtype=torch.bfloat16) * 0.2)(Hq * Dh, D) * ((Hq * Dh) ** -0.5)),
        }
    _B_in = _B_setup()

    return {
        "A_x": _A_in["x"],
        "A_k_cache": _A_in["k_cache"],
        "A_v_cache": _A_in["v_cache"],
        "A_wq": _A_in["wq"],
        "A_wo": _A_in["wo"],
        "B_x": _B_in["x"],
        "B_k_cache": _B_in["k_cache"],
        "B_v_cache": _B_in["v_cache"],
        "B_wq": _B_in["wq"],
        "B_wo": _B_in["wo"],
    }

def reference(A_x, A_k_cache, A_v_cache, A_wq, A_wo, B_x, B_k_cache, B_v_cache, B_wq, B_wo):
    def _A_ref(x, k_cache, v_cache, wq, wo):
        B, Sq, D = x.shape
        Hq, Dh = 32, 128
        Hkv = k_cache.shape[1]
        rep = Hq // Hkv
        q = (lambda x, *d: x.permute(*d))((x @ wq).reshape(B, Sq, Hq, Dh), 0, 2, 1, 3)
        k = (lambda x, n, axis: torch.repeat_interleave(x, n, dim=axis))(k_cache, rep, axis=1)
        v = (lambda x, n, axis: torch.repeat_interleave(x, n, dim=axis))(v_cache, rep, axis=1)
        scores = torch.einsum("bhqd,bhkd->bhqk", q, k) * (Dh ** -0.5)
        p = _softmax(scores, axis=-1)
        o = torch.einsum("bhqk,bhkd->bhqd", p, v)
        return (lambda x, *d: x.permute(*d))(o, 0, 2, 1, 3).reshape(B, Sq, Hq * Dh) @ wo

    def _B_ref(x, k_cache, v_cache, wq, wo):
        B, Sq, D = x.shape
        Hq, Dh = 32, 128
        Hkv, Sk = k_cache.shape[1], k_cache.shape[2]
        W = min(4096, max(256, Sk // 4))
        rep = Hq // Hkv
        q = (lambda x, *d: x.permute(*d))((x @ wq).reshape(B, Sq, Hq, Dh), 0, 2, 1, 3)
        k = (lambda x, n, axis: torch.repeat_interleave(x, n, dim=axis))(k_cache[:, :, Sk - W:, :], rep, axis=1)
        v = (lambda x, n, axis: torch.repeat_interleave(x, n, dim=axis))(v_cache[:, :, Sk - W:, :], rep, axis=1)
        scores = torch.einsum("bhqd,bhkd->bhqk", q, k) * (Dh ** -0.5)
        p = _softmax(scores, axis=-1)
        o = torch.einsum("bhqk,bhkd->bhqd", p, v)
        return (lambda x, *d: x.permute(*d))(o, 0, 2, 1, 3).reshape(B, Sq, Hq * Dh) @ wo

    a = _A_ref(A_x, A_k_cache, A_v_cache, A_wq, A_wo)
    b = _B_ref(B_x, B_k_cache, B_v_cache, B_wq, B_wo)
    return torch.concatenate([a, b], axis=-1)
```

```python
import re
TRANS=("v_exp_f32","v_log_f32","v_rcp_f32","v_rsq_f32","v_sqrt_f32","v_sin_f32","v_cos_f32")
def regs(op):
    op=op.strip()
    op=op.lstrip('-')
    m=re.fullmatch(r'\|?(?:abs\()?([vsa])(\d+)\)?\|?',op)
    if m: return [(m.group(1),int(m.group(2)))]
    m=re.fullmatch(r'([vsa])\[(\d+):(\d+)\]',op)
    if m: return [(m.group(1),i) for i in range(int(m.group(2)),int(m.group(3))+1)]
    if op=="vcc": return [('s','vcc')]
    if op=="exec": return [('s','exec')]
    if op=="m0": return [('s','m0')]
    return []
def split_ops(s):
    out=[];d=0;cur=""
    for ch in s:
        if ch in "[(": d+=1
        if ch in "])": d-=1
        if ch=="," and d==0: out.append(cur.strip());cur=""
        else: cur+=ch
    if cur.strip(): out.append(cur.strip())
    return out
class Ins:
    pass
def parse(text):
    t=text.split(';')[0].strip()
    parts=t.split(None,1)
    mn=parts[0]; rest=parts[1] if len(parts)>1 else ""
    ops=split_ops(rest)
    mods=""
    if ops:
        last=ops[-1].split(None,1)
        if len(last)>1: ops[-1]=last[0]; mods=last[1]
    I=Ins(); I.mn=mn; I.ops=ops; I.mods=mods; I.w=[]; I.r=[]; I.kind="other"; I.dpp=False; I.passes=0; I.srcc=[]; I.stdata=[]
    R=lambda k:[x for o in ops[k:] for x in regs(o)]
    if mn.startswith("v_mfma"):
        I.kind="mfma"; I.w=regs(ops[0]); I.r=R(1); I.srcc=regs(ops[3]); I.ab=regs(ops[1])+regs(ops[2])
        I.passes=8 if "32x32" in mn else (2 if "4x4" in mn else 4)
    elif mn.startswith("v_"):
        I.kind="valu"; I.dpp=("_dpp" in mn)
        if mn.startswith("v_permlane"): I.w=regs(ops[0])+regs(ops[1]); I.r=list(I.w); I.kind2="permlane"
        elif mn.startswith("v_cmp"): I.w=regs(ops[0]); I.r=R(1)
        elif mn.startswith(("v_add_co","v_sub_co","v_addc_co")): I.w=regs(ops[0])+regs(ops[1]); I.r=R(2)
        else:
            I.w=regs(ops[0]); I.r=R(1)
            if mn.startswith(("v_fmac","v_dot2c")) or I.dpp: I.r+=regs(ops[0])
            if mn.startswith("v_cndmask") and len(ops)==3: I.r+=[('s','vcc')]
    elif mn.startswith("buffer_load"):
        I.kind="vmem"
        if " lds" in " "+mods: I.r=R(0)+[('s','m0')]; I.lds=True
        else: I.w=regs(ops[0]); I.r=R(1)
    elif mn.startswith(("buffer_store","buffer_atomic")):
        I.kind="vmem"; I.r=R(0)
        if "x4" in mn or "x3" in mn: I.stdata=regs(ops[0])
        if mn.startswith("buffer_atomic") and "sc0" in mods: I.w=regs(ops[0])
    elif mn.startswith("global_load"):
        I.kind="vmem"; I.w=regs(ops[0]); I.r=R(1)
    elif mn.startswith("global_store"):
        I.kind="vmem"; I.r=R(0)
        if "x4" in mn or "x3" in mn: I.stdata=regs(ops[1])
    elif mn.startswith("ds_read"): I.kind="ds"; I.w=regs(ops[0]); I.r=R(1)
    elif mn.startswith(("ds_write","ds_add","ds_max")): I.kind="ds"; I.r=R(0)
    elif mn.startswith("s_"):
        I.kind="salu"
        if mn.startswith(("s_cmp","s_waitcnt","s_barrier","s_nop","s_cbranch","s_branch","s_endpgm","s_setprio","s_sleep")): I.r=R(0)
        else: I.w=regs(ops[0]) if ops else []; I.r=R(1)
    else: raise Exception("unknown insn "+text)
    return I
def need(P,C):
    n=0
    pw=set(P.w); cr=set(C.r); cw=set(C.w)
    vw={x for x in pw if x[0] in 'va'}; sw={x for x in pw if x[0]=='s'}
    if P.kind=="valu":
        if C.kind=="mfma" and vw&cr: n=max(n,2)
        if C.kind=="valu" and C.dpp and vw&cr: n=max(n,2)
        if C.kind=="valu" and C.mn.startswith("v_permlane") and vw&cr: n=max(n,2)
        if C.kind=="valu" and C.mn.startswith(("v_readfirstlane","v_readlane")) and vw&cr: n=max(n,1)
        if P.mn.startswith(TRANS) and C.kind in("valu","mfma") and vw&cr: n=max(n,1)
        if C.kind=="valu" and sw&cr: n=max(n,2)
        if C.kind=="vmem" and sw&cr: n=max(n,5)
        if C.kind=="salu" and sw&cr: n=max(n,1)
        if C.kind=="salu" and C.mn.startswith("s_cbranch_vcc") and ('s','vcc') in sw: n=max(n,1)
    if P.kind=="mfma":
        T={2:5,4:8,8:12}[P.passes]
        if C.kind=="mfma":
            if vw&set(C.ab): n=max(n,T)
            if vw&set(C.srcc):
                if P.w==C.srcc and P.passes==C.passes: n=max(n,2 if P.passes==2 else 0)
                else: n=max(n,{2:4,4:6,8:10}[P.passes])
            elif vw&cw: n=max(n,T)
        elif C.kind in("valu","vmem","ds"):
            if vw&(cr|cw): n=max(n,T)
            if C.kind=="valu" and set(P.srcc)&cw: n=max(n,{2:1,4:3,8:7}[P.passes])
    if P.kind=="vmem" and P.stdata and set(P.stdata)&cw: n=max(n,2)
    if P.kind=="salu" and ('s','m0') in pw and C.kind=="vmem" and ('s','m0') in cr: n=max(n,1)
    return n
class Asm:
    def __init__(s):
        s.L=[]; s.hist=[]
        s.vm=0
        s.vmdone=0
        s.cyc=0
    def raw(s,t): s.L.append(t)
    def _adv(s,k):
        s.hist=[(i,e+k) for i,e in s.hist if e+k<20]
    def nop(s,n):
        while n>0:
            k=min(n,16); s.L.append(f"s_nop {k-1}"); s._adv(k); n-=k; s.cyc+=4*k
    def __call__(s,text):
        for t in text.split("\n"):
            t=t.strip()
            if not t: continue
            if t.endswith(":") : s.L.append(t); continue
            I=parse(t)
            n=0
            for P,e in s.hist: n=max(n,need(P,I)-e)
            if n>0: s.nop(n)
            s.L.append(t)
            if I.mn=="s_nop": s._adv(int(I.ops[0])+1); s.cyc+=4*(int(I.ops[0])+1); continue
            s._adv(1); s.hist.append((I,0))
            s.cyc+= 16 if I.kind=="mfma" else (8 if I.mn.startswith(TRANS) else 4)
            if I.kind=="vmem": s.vm+=1
        return s.vm-1
    def settle(s):
        n=0
        for P,e in s.hist:
            m=0
            if P.kind=="mfma": m={2:5,4:8,8:12}[P.passes]
            elif P.kind=="valu": m=5 if any(x[0]=='s' for x in P.w) else 2
            elif P.kind=="vmem" and P.stdata: m=2
            elif P.kind=="salu" and ('s','m0') in P.w: m=1
            n=max(n,m-e)
        if n>0: s.nop(n)
    def vmwait(s,idx):
        if idx<s.vmdone: return
        n=s.vm-1-idx
        assert n<=63, n
        s(f"s_waitcnt vmcnt({n})"); s.vmdone=idx+1
    def vmall(s):
        s("s_waitcnt vmcnt(0)"); s.vmdone=s.vm
    def text(s): return "\n".join(s.L)
```

```python
import sys, math, struct
from asmlib import Asm
KNAME="concat_heads__gqa_block_cached__sliding_block_cached__decode_kernel"
QP=0x1000; OP=0x80000; P2=0x200000; REC=640
L_W=0; L_X=32768; XP=1088; L_QF=37120; L_MXB=39168; L_MXA=39424; L_OX=39680; OXP=2112; L_OB=48128; OBP=192; LDS=49152
def f2u(x): return struct.unpack("<I",struct.pack("<f",x))[0]
CSC=f2u(math.log2(math.e)/math.sqrt(128.0))
SPIN=400000
def gen(name=KNAME, W=8, P=36, WP=8, budget=300, wo_at=None, stamps=False, W0=None):
    a=Asm(); END=f"LEND_{name}"
    nst=[0]
    def stamp():
        if stamps:
            k=nst[0]; nst[0]+=1
            a(f"s_memrealtime s[{76+2*k}:{77+2*k}]")
    AK,AV,BK,BV,SWQ,SX,SWO,SWS,SOUT=32,36,40,44,48,52,56,60,64
    sA,sB,sT,sC,sMSK,sEP,sSP,sM0=68,69,70,71,72,73,74,75
    s30,s31=30,31
    vL,vK,vV,vMA,vMB=1,2,3,4,5
    vT=[6,7,8,9]; vG,vN=10,11
    qA,qB=12,16; O0,O1=20,24; vl,vmc,vmx=28,29,30
    vX=[32,34]; vt=36
    vW0,vW1,vTR=44,45,46
    S0=48; R0=112; NSLOT=36
    srd=lambda r:f"s[{r}:{r+3}]"
    def mksrd(d,lo,hi,n):
        a(f"s_mov_b32 s{d}, s{lo}\ns_and_b32 s{d+1}, s{hi}, 0xffff\ns_mov_b32 s{d+2}, {n}\ns_mov_b32 s{d+3}, 0x20000")
    a.raw(f".p2align 8\n.globl {name}\n.type {name},@function\n{name}:")
    a(f"s_cmp_ge_u32 s2, 256\ns_cbranch_scc1 {END}")
    a("s_load_dwordx16 s[4:19], s[0:1], 0\ns_load_dwordx8 s[20:27], s[0:1], 64\ns_load_dwordx2 s[28:29], s[0:1], 96")
    stamp()
    a(f"v_lshrrev_b32 v{vL}, 6, v0\nv_readfirstlane_b32 s3, v{vL}\nv_and_b32 v{vL}, 63, v0")
    a(f"v_lshrrev_b32 v{vG}, 4, v{vL}\nv_and_b32 v{vN}, 15, v{vL}")
    a(f"v_and_b32 v{vt}, 1, v{vG}\nv_lshlrev_b32 v{vt}, 1, v{vt}\nv_and_b32 v{vt+1}, 7, v{vL}\nv_xor_b32 v{vt}, v{vt}, v{vt+1}\nv_lshlrev_b32 v{vt}, 4, v{vt}")
    a(f"v_lshrrev_b32 v{vt+1}, 3, v{vL}\nv_lshl_add_u32 v{vW0}, v{vt+1}, 13, v{vt}\nv_xor_b32 v{vW1}, 64, v{vW0}")
    a(f"v_lshlrev_b32 v{vV}, 4, v{vL}")
    a(f"s_and_b32 s{s30}, s2, 1\ns_lshl_b32 s{s30}, s{s30}, 21\ns_lshl_b32 s{s31}, s3, 19\ns_add_u32 s{s30}, s{s30}, s{s31}")
    a(f"s_bfe_u32 s{s31}, s2, 0x60001\ns_lshl_b32 s{s31}, s{s31}, 7\ns_add_u32 s{sT}, s{s30}, s{s31}")
    a(f"s_lshl_b32 s{sM0}, s3, 13")
    a(f"s_mov_b32 s{SWQ+2}, 0x400000\ns_mov_b32 s{SWQ+3}, 0x20000\ns_mov_b32 s{SX+2}, 0x1000\ns_mov_b32 s{SX+3}, 0x20000")
    a(f"s_mov_b32 m0, s{sM0}")
    a("s_cmp_lt_u32 s2, 128")
    a("s_waitcnt lgkmcnt(0)")
    a(f"s_cselect_b32 s{SWQ}, s10, s20\ns_cselect_b32 s{SWQ+1}, s11, s21\ns_cselect_b32 s{SX}, s4, s14\ns_cselect_b32 s{SX+1}, s5, s15")
    a(f"s_cselect_b32 s{SWO}, s12, s22\ns_cselect_b32 s{SWO+1}, s13, s23")
    a(f"s_load_dword s{sEP}, s[28:29], 0")
    for i in range(8):
        if i: a(f"s_add_u32 s{sT}, s{sT}, 0x10000\ns_add_u32 m0, m0, 0x400")
        a(f"buffer_load_dwordx4 v{vW1 if i&1 else vW0}, {srd(SWQ)}, s{sT} offen nt lds")
    a(f"s_mul_i32 s{s30}, s3, {XP}\ns_add_u32 m0, s{s30}, {L_X}\ns_lshl_b32 s{sT}, s3, 10")
    i_x=a(f"buffer_load_dwordx4 v{vV}, {srd(SX)}, s{sT} offen lds")
    mksrd(BK,16,17,0x4000000); mksrd(BV,18,19,0x4000000); mksrd(AK,6,7,0x4000000); mksrd(AV,8,9,0x4000000)
    mksrd(SWS,28,29,0x400000); mksrd(SOUT,24,25,8192)
    a(f"s_mov_b32 s{SWO+2}, 0x400000\ns_mov_b32 s{SWO+3}, 0x20000")
    a(f"v_lshrrev_b32 v{vt}, 2, v{vN}\nv_lshlrev_b32 v{vK}, 8, v{vt}\nv_lshl_add_u32 v{vK}, v{vG}, 6, v{vK}\nv_and_b32 v{vt}, 3, v{vL}\nv_lshl_add_u32 v{vK}, v{vt}, 4, v{vK}")
    a(f"s_lshr_b32 s{s30}, s2, 3\ns_lshl_b32 s{s30}, s{s30}, 21\ns_lshl_b32 s{s31}, s3, 12\ns_add_u32 s{s30}, s{s30}, s{s31}\ns_and_b32 s{s31}, s2, 7")
    a(f"s_lshl_b32 s{sA}, s{s31}, 18\ns_add_u32 s{sA}, s{sA}, s{s30}\ns_lshl_b32 s{sB}, s{s31}, 16\ns_add_u32 s{sB}, s{sB}, s{s30}\ns_add_u32 s{sB}, s{sB}, {6144*256}")
    a(f"s_mov_b32 s{sC}, {CSC}\ns_mov_b32 s{sMSK}, 0xffffff00\ns_mov_b32 s{sSP}, {SPIN}")
    loads=[("BK",i) for i in range(16)]+[("BV",i) for i in range(16)]+[("AK",i) for i in range(64)]+[("AV",i) for i in range(64)]
    wol=[("WO",i) for i in range(8)]
    if wo_at is None: wo_at=len(loads)
    loads=loads[:wo_at]+wol+loads[wo_at:]
    free=list(range(NSLOT)); slot={}; vidx={}
    def issue(ld):
        kind,i=ld
        if kind=="WO":
            if i==0:
                a(f"v_and_b32 v{vW1}, 0x70, v{vW0}\nv_lshrrev_b32 v{vW0}, 3, v{vL}\nv_lshl_add_u32 v{vW0}, v{vW0}, 10, v{vW1}\nv_xor_b32 v{vW1}, 64, v{vW0}")
                a(f"s_bfe_u32 s{s30}, s2, 0x60001\ns_lshl_b32 s{s30}, s{s30}, 16\ns_and_b32 s{s31}, s2, 1\ns_lshl_b32 s{s31}, s{s31}, 9\ns_add_u32 s{s30}, s{s30}, s{s31}\ns_lshl_b32 s{s31}, s3, 7\ns_add_u32 s4, s{s30}, s{s31}")
                a(f"s_mov_b32 m0, s{sM0}")
            else: a(f"s_add_u32 s4, s4, 0x2000\ns_add_u32 m0, m0, 0x400")
            vidx[ld]=a(f"buffer_load_dwordx4 v{vW1 if i&1 else vW0}, {srd(SWO)}, s4 offen nt lds")
            return
        sl=free.pop(0); slot[ld]=sl; r=R0+4*sl
        base=sB if kind[0]=="B" else sA
        if i%4==0: a(f"s_add_u32 s{sT}, s{base}, {(i//4)*16384}")
        sr={"AK":AK,"AV":AV,"BK":BK,"BV":BV}[kind]
        vidx[ld]=a(f"buffer_load_dwordx4 v[{r}:{r+3}], v{vK if kind[1]=='K' else vV}, {srd(sr)}, s{sT} offen offset:{(i%4)*1024} nt")
    def rel(ld): free.append(slot[ld])
    def R(ld): return R0+4*slot[ld]
    def tagcheck(regs4, lab):
        for r in regs4:
            for k in range(4): a(f"v_xor_b32 v{r+k}, v{vT[k]}, v{r+k}")
        allr=[r+k for r in regs4 for k in range(4)]
        a(f"v_or3_b32 v31, v{allr[0]}, v{allr[1]}, v{allr[2]}")
        rest=allr[3:]
        while len(rest)>=2:
            a(f"v_or3_b32 v31, v31, v{rest[0]}, v{rest[1]}"); rest=rest[2:]
        if rest: a(f"v_or_b32 v31, v31, v{rest[0]}")
        a(f"v_and_b32 v31, 0xff, v31\nv_cmp_ne_u32 vcc, 0, v31\ns_cbranch_vccnz {lab}")
    retries=[]
    def poll(issue_fn, regs4, first_idx, tagname):
        chk=f"LCHK_{tagname}_{name}"; rt=f"LRT_{tagname}_{name}"
        a.vmwait(first_idx)
        a.settle(); a(f"{chk}:")
        tagcheck(regs4, rt)
        retries.append((rt,chk,issue_fn))
    def tag(r):
        for k in range(4): a(f"v_and_or_b32 v{r+k}, v{r+k}, s{sMSK}, v{vT[k]}")
    def t_qproj():
        a(f"v_and_b32 v{vt}, 1, v{vL}\nv_lshlrev_b32 v{vt}, 4, v{vt}\nv_mov_b32 v{vt+1}, 0xffff\nv_lshlrev_b32 v{vt}, v{vt}, v{vt+1}")
        a(f"v_and_b32 v{vt+1}, 2, v{vL}\nv_cmp_eq_u32 vcc, 0, v{vt+1}\nv_cndmask_b32 v{vMA}, 0, v{vt}, vcc\nv_cndmask_b32 v{vMB}, v{vt}, 0, vcc")
        a(f"v_lshrrev_b32 v{vt}, 2, v{vN}\nv_lshl_add_u32 v{vt}, v{vG}, 3, v{vt}\nv_lshlrev_b32 v{vTR}, 7, v{vt}")
        a(f"v_and_b32 v{vt}, 3, v{vN}\nv_lshl_add_u32 v{vTR}, v{vt}, 3, v{vTR}")
        a(f"v_lshrrev_b32 v{vt}, 3, v{vN}\nv_lshl_add_u32 v{vTR}, v{vt}, 5, v{vTR}\nv_and_b32 v{vt}, 1, v{vG}\nv_lshl_add_u32 v{vTR}, v{vt}, 6, v{vTR}")
        a(f"s_lshl_b32 s{s30}, s3, 5\nv_xor_b32 v{vt}, s{s30}, v{vTR}")
        a(f"v_and_b32 v{vt+1}, 3, v{vN}\nv_mul_u32_u24 v{vt+1}, {XP}, v{vt+1}\nv_lshl_add_u32 v{vt+1}, v{vG}, 4, v{vt+1}\ns_and_b32 s{s30}, s2, 1\ns_lshl_b32 s{s30}, s{s30}, 9\nv_add_u32 v{vt+1}, s{s30}, v{vt+1}")
        a("s_waitcnt lgkmcnt(0)")
        a(f"s_add_u32 s{sEP}, s{sEP}, 1")
        for k in range(4): a(f"s_add_u32 s{s30}, s{sEP}, {64*k}\ns_and_b32 s{s30}, s{s30}, 0xff\nv_mov_b32 v{vT[k]}, s{s30}")
        a.vmwait(i_x)
        a("s_barrier")
        stamp()
        for s in range(8):
            a(f"ds_read_b64_tr_b16 v[{S0+4*s}:{S0+4*s+1}], v{vt} offset:{L_W+s*4096}")
            a(f"ds_read_b64_tr_b16 v[{S0+4*s+2}:{S0+4*s+3}], v{vt} offset:{L_W+s*4096+512}")
            a(f"ds_read_b128 v[{S0+32+4*s}:{S0+32+4*s+3}], v{vt+1} offset:{L_X+s*64}")
            if s>=3:
                k=s-3
                a("s_waitcnt lgkmcnt(0)" if stamps else "s_waitcnt lgkmcnt(9)")
                a(f"v_mfma_f32_16x16x32_bf16 v[{O0}:{O0+3}], v[{S0+4*k}:{S0+4*k+3}], v[{S0+32+4*k}:{S0+32+4*k+3}], "+("0" if k==0 else f"v[{O0}:{O0+3}]"))
        for k in range(5,8):
            a("s_waitcnt lgkmcnt(0)" if stamps else f"s_waitcnt lgkmcnt({3*(7-k)})")
            a(f"v_mfma_f32_16x16x32_bf16 v[{O0}:{O0+3}], v[{S0+4*k}:{S0+4*k+3}], v[{S0+32+4*k}:{S0+32+4*k+3}], v[{O0}:{O0+3}]")
        a(f"v_lshlrev_b32 v{vt}, 14, v{vN}\nv_lshl_add_u32 v{vt}, v{vG}, 4, v{vt}")
        a(f"s_lshr_b32 s{s30}, s2, 7\ns_lshl_b32 s{s30}, s{s30}, 1\ns_and_b32 s{s31}, s2, 1\ns_add_u32 s{s30}, s{s30}, s{s31}\ns_lshl_b32 s{s30}, s{s30}, 16")
        a(f"s_bfe_u32 s{s31}, s2, 0x60001\ns_lshl_b32 s{s31}, s{s31}, 8\ns_add_u32 s{s30}, s{s30}, s{s31}\ns_lshl_b32 s{s31}, s3, 6\ns_add_u32 s{s30}, s{s30}, s{s31}\ns_add_u32 s{s30}, s{s30}, {QP}")
        tag(O0)
        a(f"s_mov_b32 exec_lo, 0x000f000f\ns_mov_b32 exec_hi, 0x000f000f")
        a(f"buffer_store_dwordx4 v[{O0}:{O0+3}], v{vt}, {srd(SWS)}, s{s30} offen sc1")
        a("s_mov_b64 exec, -1")
        stamp()
    QR=[S0,S0+4]
    def qpoll_issue():
        a(f"buffer_load_dwordx4 v[{QR[0]}:{QR[0]+3}], v47, {srd(SWS)}, s5 offen sc1")
        return a(f"buffer_load_dwordx4 v[{QR[1]}:{QR[1]+3}], v47, {srd(SWS)}, s6 offen sc1")
    st={}
    def t_qpoll0():
        a(f"v_lshlrev_b32 v47, 1, v{vK}")
        a(f"s_lshr_b32 s5, s3, 1\ns_lshl_b32 s5, s5, 17\ns_lshr_b32 s{s30}, s2, 6\ns_lshl_b32 s{s30}, s{s30}, 14\ns_add_u32 s5, s5, s{s30}")
        a(f"s_bfe_u32 s{s30}, s2, 0x30003\ns_lshl_b32 s{s30}, s{s30}, 11\ns_add_u32 s5, s5, s{s30}\ns_and_b32 s{s30}, s3, 1\ns_lshl_b32 s{s30}, s{s30}, 4\ns_add_u32 s5, s5, s{s30}\ns_add_u32 s5, s5, {QP}\ns_add_u32 s6, s5, 0x10000")
        st['qp']=qpoll_issue()
    def t_qpoll1():
        stamp()
        poll(qpoll_issue,QR,st['qp'],"q")
        for k in range(4): a(f"v_add_f32 v{QR[0]+k}, v{QR[0]+k}, v{QR[1]+k}")
        a(f"v_cvt_pk_bf16_f32 v{QR[0]}, v{QR[0]}, v{QR[0]+1}\nv_cvt_pk_bf16_f32 v{QR[0]+1}, v{QR[0]+2}, v{QR[0]+3}")
        a(f"s_lshr_b32 s{s30}, s3, 1\ns_lshl_b32 s{s30}, s{s30}, 10\ns_and_b32 s{s31}, s3, 1\ns_lshl_b32 s{s31}, s{s31}, 3\ns_add_u32 s{s30}, s{s30}, s{s31}\nv_add_u32 v{vt}, s{s30}, v{vV}")
        a(f"ds_write_b64 v{vt}, v[{QR[0]}:{QR[0]+1}] offset:{L_QF}\ns_waitcnt lgkmcnt(0)\ns_barrier")
        a(f"ds_read_b128 v[{qA}:{qA+3}], v{vV} offset:{L_QF}\nds_read_b128 v[{qB}:{qB+3}], v{vV} offset:{L_QF+1024}\ns_waitcnt lgkmcnt(0)")
        stamp()
    def t_k(br,t):
        q=qB if br=="B" else qA
        lds=[(br+"K",4*t+c) for c in range(4)]
        for ld in lds:
            r=R(ld); a(f"v_mfma_f32_16x16x32_bf16 v[{r}:{r+3}], v[{r}:{r+3}], v[{q}:{q+3}], 0")
        for e in range(4):
            for c,ld in enumerate(lds):
                s=S0+4*t+c; r=R(ld)+e
                if e==0: a(f"v_mov_b32_dpp v{s}, v{r} quad_perm:[0,0,0,0] row_mask:0xf bank_mask:0xf")
                else: a(f"v_add_f32_dpp v{s}, v{r}, v{s} quad_perm:[{e},{e},{e},{e}] row_mask:0xf bank_mask:0xf")
        s=S0+4*t
        if t==0: a(f"v_max_f32 v{vmx}, v{s}, v{s+1}")
        else: a(f"v_max3_f32 v{vmx}, v{s}, v{s+1}, v{vmx}")
        a(f"v_max3_f32 v{vmx}, v{s+2}, v{s+3}, v{vmx}")
        for ld in lds: rel(ld)
    def t_max(br):
        MX=L_MXB if br=="B" else L_MXA
        a(f"v_lshrrev_b32 v{vt+4}, 2, v{vN}\nv_lshlrev_b32 v{vt+4}, 6, v{vt+4}\nv_lshl_add_u32 v{vt+5}, v{vG}, 2, v{vt+4}\ns_lshl_b32 s{s30}, s3, 4\nv_add_u32 v{vt+5}, s{s30}, v{vt+5}")
        a(f"ds_write_b32 v{vt+5}, v{vmx} offset:{MX}\ns_waitcnt lgkmcnt(0)\ns_barrier")
        T=[O0,O1,vX[0],vt]
        for k in range(4): a(f"ds_read_b128 v[{T[k]}:{T[k]+3}], v{vt+4} offset:{MX+16*k}")
        a("s_waitcnt lgkmcnt(0)")
        for k in range(4): a(f"v_max3_f32 v{T[k]}, v{T[k]}, v{T[k]+1}, v{T[k]+2}")
        a(f"v_max3_f32 v{T[0]}, v{T[0]}, v{T[0]+3}, v{T[1]}\nv_max3_f32 v{T[2]}, v{T[2]}, v{T[2]+3}, v{T[3]}\nv_max3_f32 v{T[0]}, v{T[0]}, v{T[1]+3}, v{T[3]+3}\nv_max_f32 v{T[0]}, v{T[0]}, v{T[2]}")
        a(f"v_mul_f32 v{vmc}, s{sC}, v{T[0]}\nv_and_b32 v{vmc}, s{sMSK}, v{vmc}\nv_mov_b32 v{vl}, 0")
    def t_exp(br,t):
        ss=[S0+4*t+c for c in range(4)]
        for s in ss: a(f"v_fma_f32 v{s}, v{s}, s{sC}, -v{vmc}")
        for s in ss: a(f"v_exp_f32 v{s}, v{s}")
        a(f"v_add_f32 v{vt}, v{ss[0]}, v{ss[1]}\nv_add_f32 v{vt+1}, v{ss[2]}, v{ss[3]}\nv_add_f32 v{vl}, v{vl}, v{vt}\nv_add_f32 v{vl}, v{vl}, v{vt+1}")
        for s in ss: a(f"v_cvt_pk_bf16_f32 v{s}, v{s}, v{s}")
    def xprep(i):
        x=vX[i&1]; a(f"v_and_b32 v{x}, v{S0+i}, v{vMA}\nv_and_b32 v{x+1}, v{S0+i}, v{vMB}")
    def t_lx(br):
        a(f"s_mul_i32 s{s30}, s3, {OXP}")
        a(f"v_and_b32 v{vt+4}, 12, v{vN}\nv_add_u32 v{vt+4}, v{vt+4}, v{vG}\nv_lshl_add_u32 v{vt+4}, v{vt+4}, 2, s{s30}")
        a(f"ds_write_b32 v{vt+4}, v{vl} offset:{L_OX+2048}")
        a(f"v_lshl_add_u32 v{vt+4}, v{vL}, 5, s{s30}")
        a(f"s_lshl_b32 s{s30}, s3, 9\ns_lshl_b32 s{s31}, s3, 4\ns_add_u32 s{s31}, s{s31}, 2048")
        a(f"v_add_u32 v{vt+5}, s{s30}, v{vV}\nv_mov_b32 v{vt+6}, s{s31}\nv_cmp_gt_u32 vcc, 32, v{vL}\nv_cndmask_b32 v{vt+5}, v{vt+6}, v{vt+5}, vcc")
        a(f"v_min_u32 v{vt+6}, 0x200, v{vV}")
        a(f"s_lshr_b32 s{s30}, s2, 3\ns_lshl_b32 s{s30}, s{s30}, 2\ns_add_u32 s{s30}, s{s30}, s3\ns_lshl_b32 s{s30}, s{s30}, 3\ns_and_b32 s{s31}, s2, 7\ns_add_u32 s{s30}, s{s30}, s{s31}\ns_mul_i32 s7, s{s30}, {REC}\ns_add_u32 s7, s7, {OP+(1024*REC if br=='B' else 0)}")
        a(f"s_lshl_b32 s{s30}, s3, 2\ns_lshl_b32 s8, 1, s{s30}")
        xprep(0)
    def t_v(br,i,n):
        ld=(br+"V",i); r=R(ld); x=vX[i&1]
        a(f"v_mfma_f32_16x16x16_bf16 v[{O0}:{O0+3}], v[{x}:{x+1}], v[{r}:{r+1}], "+("0" if i==0 else f"v[{O0}:{O0+3}]"))
        a(f"v_mfma_f32_16x16x16_bf16 v[{O1}:{O1+3}], v[{x}:{x+1}], v[{r+2}:{r+3}], "+("0" if i==0 else f"v[{O1}:{O1+3}]"))
        if i+1<n: xprep(i+1)
        rel(ld)
    def t_pub(br):
        if br=="A": stamp()
        a(f"ds_write_b128 v{vt+4}, v[{O0}:{O0+3}] offset:{L_OX}\nds_write_b128 v{vt+4}, v[{O1}:{O1+3}] offset:{L_OX+16}\ns_waitcnt lgkmcnt(0)\ns_barrier")
        T=[O0,O1,vX[0],vt]
        for k in range(4): a(f"ds_read_b128 v[{T[k]}:{T[k]+3}], v{vt+5} offset:{L_OX+k*OXP}")
        a("s_waitcnt lgkmcnt(0)" if stamps else "s_waitcnt lgkmcnt(2)")
        for k in range(4): a(f"v_add_f32 v{O0+k}, v{O0+k}, v{O1+k}")
        a("s_waitcnt lgkmcnt(0)")
        for k in range(4): a(f"v_add_f32 v{vt+k}, v{vt+k}, v{vX[0]+k}")
        for k in range(4): a(f"v_add_f32 v{O0+k}, v{O0+k}, v{vt+k}")
        a(f"s_mov_b32 exec_lo, 0\nv_add_f32 v{O0+1}, v{O0}, v{O0+1}\nv_add_f32 v{O0+2}, v{O0+2}, v{O0+3}\nv_mov_b32 v{O0}, v{vmc}\nv_add_f32 v{O0+1}, v{O0+1}, v{O0+2}")
        a(f"s_mov_b32 exec_lo, -1\ns_mov_b32 exec_hi, s8")
        tag(O0)
        a(f"buffer_store_dwordx4 v[{O0}:{O0+3}], v{vt+6}, {srd(SWS)}, s7 offen sc1")
        a("s_mov_b64 exec, -1")
    tasks=[]
    for br,nt in (("B",4),("A",16)):
        for t in range(nt): tasks.append(([(br+"K",4*t+3)], lambda br=br,t=t:t_k(br,t)))
        tasks.append(([], lambda br=br:t_max(br)))
        for t in range(nt): tasks.append(([], lambda br=br,t=t:t_exp(br,t)))
        tasks.append(([], lambda br=br:t_lx(br)))
        for i in range(4*nt): tasks.append(([(br+"V",i)], lambda br=br,i=i,nt=nt:t_v(br,i,4*nt)))
        tasks.append(([], lambda br=br:t_pub(br)))
    ti=0; qdone=False; qproj=False
    def ready(k): return all(d in vidx and vidx[d]<a.vmdone for d in tasks[k][0])
    def run(k):
        for d in tasks[k][0]: a.vmwait(vidx[d])
        tasks[k][1]()
    for li,ld in enumerate(loads):
        if li==P-WP: t_qpoll0()
        if li==P: t_qpoll1(); qdone=True
        if ld[0]!="WO":
            while not free:
                assert qdone
                run(ti); ti+=1
        w=W0 if (W0 and li<P) else W
        if a.vm-a.vmdone>=w: a.vmwait(a.vm-w)
        issue(ld)
        if not qproj and i_x<a.vmdone+1:
            t_qproj(); qproj=True
        if qdone:
            c0=a.cyc
            while ti<len(tasks) and ready(ti) and a.cyc-c0<budget:
                run(ti); ti+=1
    while ti<len(tasks): run(ti); ti+=1
    stamp()
    H=[R0,R0+4,R0+8,R0+12]
    a(f"v_mul_u32_u24 v{vt}, {REC}, v{vG}\nv_lshl_add_u32 v{vt+1}, v{vN}, 4, v{vt}\ns_bfe_u32 s{s30}, s2, 0x10001\ns_lshl_b32 s{s30}, s{s30}, 8\nv_add_u32 v{vt+1}, s{s30}, v{vt+1}")
    a(f"s_lshr_b32 s{s30}, s2, 7\ns_lshl_b32 s{s30}, s{s30}, 2\ns_add_u32 s{s30}, s{s30}, s3\ns_lshl_b32 s{s30}, s{s30}, 5\ns_bfe_u32 s{s31}, s2, 0x50002\ns_add_u32 s{s30}, s{s30}, s{s31}\ns_mul_i32 s5, s{s30}, {8*REC}\ns_add_u32 s5, s5, {OP}")
    def h1_issue():
        a(f"buffer_load_dwordx4 v[{H[2]}:{H[2]+3}], v{vt}, {srd(SWS)}, s5 offen offset:512 sc1")
        a(f"buffer_load_dwordx4 v[{H[3]}:{H[3]+3}], v{vt}, {srd(SWS)}, s5 offen offset:{512+4*REC} sc1")
        a(f"buffer_load_dwordx4 v[{H[0]}:{H[0]+3}], v{vt+1}, {srd(SWS)}, s5 offen sc1")
        return a(f"buffer_load_dwordx4 v[{H[1]}:{H[1]+3}], v{vt+1}, {srd(SWS)}, s5 offen offset:{4*REC} sc1")
    i1=h1_issue()
    WF=S0
    a.vmwait(vidx[("WO",7)])
    a(f"v_add_u32 v{vTR}, s{sM0}, v{vTR}")
    for tt in range(4):
        if tt: a(f"v_xor_b32 v{vt+2+tt}, {32*tt}, v{vTR}")
        ar=vt+2+tt if tt else vTR
        for s in range(2):
            r=WF+8*tt+4*s
            a(f"ds_read_b64_tr_b16 v[{r}:{r+1}], v{ar} offset:{L_W+s*4096}\nds_read_b64_tr_b16 v[{r+2}:{r+3}], v{ar} offset:{L_W+s*4096+512}")
    vC=vmx
    a(f"v_and_b32 v{vC}, 1, v{vG}\nv_lshlrev_b32 v{vC}, 1, v{vC}\nv_lshrrev_b32 v{vl}, 1, v{vG}\nv_or_b32 v{vC}, v{vC}, v{vl}")
    vOBw,vOBr,vP2=qA,qA+1,qA+2
    a(f"v_lshl_add_u32 v{vOBw}, v{vN}, 2, v{vC}\ns_mul_i32 s{s30}, s3, {OBP}\nv_lshl_add_u32 v{vOBw}, v{vOBw}, 1, s{s30}")
    a(f"v_and_b32 v{vl}, 3, v{vN}\nv_mul_u32_u24 v{vOBr}, {OBP}, v{vl}\nv_lshl_add_u32 v{vOBr}, v{vG}, 4, v{vOBr}")
    a(f"v_lshlrev_b32 v{vP2}, 11, v{vl}\nv_lshrrev_b32 v{vl}, 2, v{vN}\nv_lshl_add_u32 v{vP2}, v{vl}, 6, v{vP2}\nv_lshl_add_u32 v{vP2}, v{vG}, 4, v{vP2}")
    a(f"s_lshr_b32 s6, s2, 1\ns_lshl_b32 s6, s6, 13\ns_and_b32 s{s30}, s2, 1\ns_lshl_b32 s{s30}, s{s30}, 10\ns_add_u32 s6, s6, s{s30}\ns_lshl_b32 s{s30}, s3, 8\ns_add_u32 s6, s6, s{s30}\ns_add_u32 s6, s6, {P2}")
    a(f"s_mov_b32 s8, 0x00f000f0\ns_mov_b32 s9, s8\ns_mov_b32 s10, 0x0f000f00\ns_mov_b32 s11, s10\ns_mov_b32 s12, 0xf000f000\ns_mov_b32 s13, s12")
    vH2,vOut=qB,qB+1
    a(f"v_lshrrev_b32 v{vH2}, 2, v{vL}\nv_lshlrev_b32 v{vH2}, 13, v{vH2}\nv_and_b32 v{vl}, 3, v{vL}\nv_lshl_add_u32 v{vH2}, v{vl}, 4, v{vH2}")
    a(f"s_lshr_b32 s14, s2, 7\ns_lshl_b32 s14, s14, 19\ns_and_b32 s{s30}, s2, 127\ns_lshl_b32 s{s30}, s{s30}, 6\ns_add_u32 s14, s14, s{s30}\ns_add_u32 s14, s14, {P2}")
    a(f"s_add_u32 s15, s14, 0x20000\ns_add_u32 s16, s14, 0x40000\ns_add_u32 s17, s14, 0x60000")
    a(f"v_lshl_add_u32 v{vOut}, v{vl}, 2, v{vC}\nv_lshlrev_b32 v{vOut}, 1, v{vOut}")
    a(f"s_bfe_u32 s18, s2, 0x20005\ns_lshl_b32 s18, s18, 11\ns_lshr_b32 s{s30}, s2, 7\ns_lshl_b32 s{s30}, s{s30}, 10\ns_add_u32 s18, s18, s{s30}\ns_and_b32 s{s30}, s2, 31\ns_lshl_b32 s{s30}, s{s30}, 5\ns_add_u32 s18, s18, s{s30}")
    a("s_waitcnt lgkmcnt(0)")
    poll(h1_issue,H,i1,"h1")
    stamp()
    m1,l1,m2,l2=H[2],H[2]+1,H[3],H[3]+1
    t0,t1=H[2]+2,H[2]+3
    a(f"v_max_f32 v{t0}, v{m1}, v{m2}\nv_max_f32 v{t1}, v{m1}, v{m2}\nv_permlane32_swap_b32 v{t0}, v{t1}\nv_max_f32 v{t0}, v{t0}, v{t1}\nv_mov_b32 v{t1}, v{t0}\nv_permlane16_swap_b32 v{t0}, v{t1}\nv_max_f32 v{t0}, v{t0}, v{t1}")
    a(f"v_sub_f32 v{m1}, v{m1}, v{t0}\nv_sub_f32 v{m2}, v{m2}, v{t0}\nv_exp_f32 v{m1}, v{m1}\nv_exp_f32 v{m2}, v{m2}")
    a(f"v_mul_f32 v{t0}, v{m1}, v{l1}")
    for k in range(4): a(f"v_mul_f32 v{H[0]+k}, v{m1}, v{H[0]+k}")
    a(f"v_fmac_f32 v{t0}, v{m2}, v{l2}")
    a(f"v_mov_b32 v{t1}, v{t0}")
    for k in range(4): a(f"v_fmac_f32 v{H[0]+k}, v{m2}, v{H[1]+k}")
    a(f"v_permlane32_swap_b32 v{t0}, v{t1}\nv_permlane32_swap_b32 v{H[0]}, v{H[0]+1}\nv_permlane32_swap_b32 v{H[0]+2}, v{H[0]+3}")
    a(f"v_add_f32 v{t0}, v{t0}, v{t1}\nv_add_f32 v{H[0]}, v{H[0]}, v{H[0]+1}\nv_add_f32 v{H[0]+2}, v{H[0]+2}, v{H[0]+3}\nv_mov_b32 v{t1}, v{t0}")
    a(f"v_permlane16_swap_b32 v{H[0]}, v{H[0]+2}\nv_permlane16_swap_b32 v{t0}, v{t1}\nv_add_f32 v{H[0]}, v{H[0]}, v{H[0]+2}\nv_add_f32 v{t0}, v{t0}, v{t1}")
    a(f"v_rcp_f32 v{t0}, v{t0}\nv_mul_f32 v{H[0]}, v{H[0]}, v{t0}\nv_cvt_pk_bf16_f32 v{H[0]}, v{H[0]}, v{H[0]}")
    a(f"ds_write_b16 v{vOBw}, v{H[0]} offset:{L_OB}\ns_waitcnt lgkmcnt(0)\ns_barrier")
    BF=R0+16
    a(f"ds_read_b128 v[{BF}:{BF+3}], v{vOBr} offset:{L_OB}\nds_read_b128 v[{BF+4}:{BF+7}], v{vOBr} offset:{L_OB+64}\ns_waitcnt lgkmcnt(0)")
    D=R0+24
    for tt in range(4):
        d=D+4*tt
        a(f"v_mfma_f32_16x16x32_bf16 v[{d}:{d+3}], v[{WF+8*tt}:{WF+8*tt+3}], v[{BF}:{BF+3}], 0")
        a(f"v_mfma_f32_16x16x32_bf16 v[{d}:{d+3}], v[{WF+8*tt+4}:{WF+8*tt+7}], v[{BF+4}:{BF+7}], v[{d}:{d+3}]")
    for tt in range(1,4):
        for k in range(4): a(f"v_cndmask_b32 v{D+k}, v{D+k}, v{D+4*tt+k}, s[{6+2*tt}:{7+2*tt}]")
    tag(D)
    a(f"buffer_store_dwordx4 v[{D}:{D+3}], v{vP2}, {srd(SWS)}, s6 offen sc1")
    a(f"s_cmp_lg_u32 s3, 0\ns_cbranch_scc1 {END}")
    stamp()
    G=[R0,R0+4,R0+8,R0+12]
    def h2_issue():
        for i in range(4): r=a(f"buffer_load_dwordx4 v[{G[i]}:{G[i]+3}], v{vH2}, {srd(SWS)}, s{14+i} offen sc1")
        return r
    i2=h2_issue()
    poll(h2_issue,G,i2,"h2")
    stamp()
    for k in range(4): a(f"v_add_f32 v{G[0]+k}, v{G[0]+k}, v{G[1]+k}")
    for k in range(4): a(f"v_add_f32 v{G[2]+k}, v{G[2]+k}, v{G[3]+k}")
    for k in range(4): a(f"v_add_f32 v{G[0]+k}, v{G[0]+k}, v{G[2]+k}")
    g=G[0]
    a(f"v_permlane32_swap_b32 v{g}, v{g+1}\nv_permlane32_swap_b32 v{g+2}, v{g+3}\nv_add_f32 v{g}, v{g}, v{g+1}\nv_add_f32 v{g+2}, v{g+2}, v{g+3}")
    a(f"v_permlane16_swap_b32 v{g}, v{g+2}\nv_add_f32 v{g}, v{g}, v{g+2}")
    a(f"v_add_f32_dpp v{g}, v{g}, v{g} row_ror:4 row_mask:0xf bank_mask:0xf\nv_add_f32_dpp v{g}, v{g}, v{g} row_ror:8 row_mask:0xf bank_mask:0xf")
    a(f"v_cvt_pk_bf16_f32 v{g}, v{g}, v{g}")
    a(f"s_mov_b32 exec_lo, 0x000f000f\ns_mov_b32 exec_hi, 0x000f000f")
    a(f"buffer_store_short v{g}, v{vOut}, {srd(SOUT)}, s18 offen")
    if stamps:
        a("s_waitcnt vmcnt(0)"); stamp()
        a(f"s_mov_b64 exec, 1\ns_add_u32 s28, s28, 0xc800000\ns_addc_u32 s29, s29, 0\ns_mul_i32 s{s30}, s2, {8*nst[0]}\nv_mov_b32 v{g+2}, s{s30}\ns_waitcnt lgkmcnt(0)")
        for k in range(nst[0]):
            a(f"v_mov_b32 v{g+4+2*k}, s{76+2*k}\nv_mov_b32 v{g+5+2*k}, s{77+2*k}\nglobal_store_dwordx2 v{g+2}, v[{g+4+2*k}:{g+5+2*k}], s[28:29] offset:{8*k}")
    a(f"s_cmp_lg_u32 s2, 0\ns_cbranch_scc1 {END}")
    a(f"s_mov_b64 exec, 1\nv_mov_b32 v{g+1}, s{sEP}\nv_mov_b32 v{g+3}, 0\nbuffer_store_dword v{g+1}, v{g+3}, {srd(SWS)}, 0 offen sc1")
    a(f"{END}:\ns_endpgm")
    for rt,chk,fn in retries:
        a.hist=[]
        a(f"{rt}:\ns_sub_u32 s{sSP}, s{sSP}, 1\ns_cbranch_scc1 {END}")
        fn()
        a(f"s_waitcnt vmcnt(0)\ns_branch {chk}")
    kd=f""".p2align 6
.amdhsa_kernel {name}
  .amdhsa_next_free_vgpr 256
  .amdhsa_next_free_sgpr 102
  .amdhsa_accum_offset 256
  .amdhsa_group_segment_fixed_size 0
  .amdhsa_kernarg_size 104
  .amdhsa_user_sgpr_count 2
  .amdhsa_user_sgpr_kernarg_segment_ptr 1
  .amdhsa_system_sgpr_workgroup_id_x 1
  .amdhsa_float_denorm_mode_32 3
.end_amdhsa_kernel"""
    return a.text(), kd, nst[0]
HDR=open("concat_heads__gqa_block_cached__sliding_block_cached__decode.s.ref").read().split("; Override launch")[0]
def single(path, **kw):
    t,kd,_=gen(**kw)
    src=HDR+f"; @launch grid=(256,1,1) block=(256,1,1) lds={LDS}\n"+'.amdgcn_target "amdgcn-amd-amdhsa--gfx950"\n.text\n'+t+'\n.section .rodata,"a"\n'+kd+"\n"
    open(path,"w").write(src)
def multi(path, variants):
    out=[gen(name=n,**kw) for n,kw in variants.items()]
    hdr="".join(f"; @launch kernel={n} grid=(256,1,1) block=(256,1,1) lds={LDS}\n" for n in variants)
    src=hdr+'.amdgcn_target "amdgcn-amd-amdhsa--gfx950"\n.text\n'+"\n".join(o[0] for o in out)+'\n.section .rodata,"a"\n'+"\n".join(o[1] for o in out)+"\n"
    open(path,"w").write(src)
    return [o[2] for o in out]
if __name__=="__main__":
    from build import build
    single("concat_heads__gqa_block_cached__sliding_block_cached__decode.s")
    v={"k_plain_kernel":{}, "k_st_kernel":dict(stamps=True)}
    ns=multi("k.s",v); build("k.s","k.co"); print(ns)
```
